```python
import torch

def _softmax(x, axis=-1):
    return torch.softmax(x, dim=axis)
def _gelu(x):
    return torch.nn.functional.gelu(x, approximate="tanh")
def _silu(x):
    return torch.nn.functional.silu(x)
def _sigmoid(x):
    return torch.sigmoid(x)
def _layernorm(x, axis=-1, eps=1e-5):
    m = x.mean(dim=axis, keepdim=True)
    v = x.var(dim=axis, keepdim=True, unbiased=False)
    return (x - m) / torch.sqrt(v + eps)
def _scatter_add(tgt, idx, src, axis=0):
    return tgt.clone().index_add_(axis, idx, src)
def _segment_sum(src, seg, n):
    out = torch.zeros((n,) + src.shape[1:], dtype=src.dtype)
    return out.index_add_(0, seg, src)
def _pad(x, pw):
    flat = tuple(v for pair in reversed(pw) for v in pair)
    return torch.nn.functional.pad(x, flat)

kernel_name = 'interleave_layers__mha_block__dense_activation_gelu__prompt'

def setup_inputs():

    _w = (lambda a: (lambda t: t.to(torch.bfloat16) if t.is_floating_point() else t)(torch.as_tensor(a)))
    def _A_setup():
        B, S, D, H = 1, 2048, 448, 16
        return {
            "x": _w((lambda *s: torch.randn(*s, dtype=torch.bfloat16) * 0.05)(B, S, D)),
            "wqkv": _w((lambda *s: torch.randn(*s, dtype=torch.bfloat16) * 0.05)(D, 3 * D)),
            "wo": _w((lambda *s: torch.randn(*s, dtype=torch.bfloat16) * 0.05)(D, D)),
        }
    _A_in = _A_setup()

    def _B_setup():
        B, S, D, F = 1, 2048, 448, 1792
        return {
            "x": _w((lambda *s: torch.randn(*s, dtype=torch.bfloat16) * 0.05)(B, S, D)),
            "w1": _w((lambda *s: torch.randn(*s, dtype=torch.bfloat16) * 0.8)(D, F) * (D ** -0.5)),
            "b1": _w((lambda *s: torch.randn(*s, dtype=torch.bfloat16) * 12.8)(F) * 0.01),
            "w2": _w((lambda *s: torch.randn(*s, dtype=torch.bfloat16) * 0.2)(F, D) * (F ** -0.5)),
            "b2": _w((lambda *s: torch.randn(*s, dtype=torch.bfloat16) * 1.6)(D) * 0.01),
        }
    _B_in = _B_setup()

    return {
        "A_x": _A_in["x"],
        "A_wqkv": _A_in["wqkv"],
        "A_wo": _A_in["wo"],
        "B_x": _B_in["x"],
        "B_w1": _B_in["w1"],
        "B_b1": _B_in["b1"],
        "B_w2": _B_in["w2"],
        "B_b2": _B_in["b2"],
    }

def reference(A_x, A_wqkv, A_wo, B_x, B_w1, B_b1, B_w2, B_b2):
    def _A_ref(x, wqkv, wo):
        B, S, D = x.shape
        H = 16
        Dh = D // H
        qkv = (lambda x, *d: x.permute(*d))((x @ wqkv).reshape(B, S, 3, H, Dh), 2, 0, 3, 1, 4)
        q, k, v = qkv[0], qkv[1], qkv[2]
        scores = torch.einsum("bhqd,bhkd->bhqk", q, k) * (Dh ** -0.5)
        p = _softmax(scores, axis=-1)
        o = torch.einsum("bhqk,bhkd->bhqd", p, v)
        return (lambda x, *d: x.permute(*d))(o, 0, 2, 1, 3).reshape(B, S, D) @ wo

    def _B_ref(x, w1, b1, w2, b2):
        h = torch.einsum("bsd,df->bsf", x, w1) + b1
        h = _gelu(h)
        return torch.einsum("bsf,fd->bsd", h, w2) + b2

    x = A_x
    x = x + _A_ref(_layernorm(x, axis=-1), A_wqkv, A_wo)
    x = x + _B_ref(_layernorm(x, axis=-1), B_w1, B_b1, B_w2, B_b2)
    x = x + _A_ref(_layernorm(x, axis=-1), A_wqkv, A_wo)
    x = x + _B_ref(_layernorm(x, axis=-1), B_w1, B_b1, B_w2, B_b2)
    return x
```

```python
import re

TRANS = ("v_exp_f32", "v_log_f32", "v_rcp_f32", "v_rsq_f32", "v_sqrt_f32", "v_sin_f32", "v_cos_f32",
         "v_exp_f16", "v_rcp_f16", "v_rcp_iflag_f32")
RMW0 = ("v_fmac_f32", "v_dot2c_f32_bf16", "v_pk_fmac_f16", "v_fmac_f16", "v_dot2c_f32_f16")

def _regs(tok):
    tok = tok.strip()
    neg = tok.lstrip('-')
    m = re.fullmatch(r"abs\((.*)\)", neg)
    if m: neg = m.group(1)
    neg = neg.strip('|')
    m = re.fullmatch(r"([vas])\[(\d+):(\d+)\]", neg)
    if m:
        return [(m.group(1), i) for i in range(int(m.group(2)), int(m.group(3)) + 1)]
    m = re.fullmatch(r"([vas])(\d+)", neg)
    if m:
        return [(m.group(1), int(m.group(2)))]
    if neg in ("vcc", "vcc_lo", "vcc_hi"): return [("vcc", 0)]
    if neg in ("exec", "exec_lo", "exec_hi"): return [("exec", 0)]
    if neg == "m0": return [("m0", 0)]
    return []

class Ins:
    __slots__ = ("text", "op", "wr", "rd", "kind", "passes", "srcc", "srcab", "dst", "lds_dma", "wide_store", "comment")
    def __init__(self, text):
        self.text = text
        t = text.split(";")[0].strip()
        parts = t.split(None, 1)
        self.op = op = parts[0]
        rest = parts[1] if len(parts) > 1 else ""
        ops = [o.strip() for o in rest.split(",")] if rest else []
        mods = ""
        if ops:
            lastparts = ops[-1].split(None, 1)
            if len(lastparts) > 1:
                ops[-1] = lastparts[0]; mods = lastparts[1]
        R = [_regs(o) for o in ops]
        self.wr = []; self.rd = []; self.passes = 0; self.srcc = []; self.srcab = []; self.dst = []
        self.lds_dma = False; self.wide_store = False
        base = re.sub(r"_(e32|e64|sdwa|dpp)$", "", op)
        if op.startswith("v_mfma"):
            self.kind = "mfma"
            self.passes = 8 if "32x32x16" in op else (4 if "16x16x32" in op else 16)
            self.wr = R[0]; self.dst = R[0]; self.srcab = R[1] + R[2]; self.srcc = R[3]
            self.rd = self.srcab + self.srcc
        elif op.startswith("v_cmp"):
            self.kind = "valu"; self.wr = R[0]; self.rd = sum(R[1:], [])
            if op.startswith("v_cmpx"): self.wr = self.wr + [("exec", 0)]
        elif base in ("v_readfirstlane_b32", "v_readlane_b32"):
            self.kind = "valu"; self.wr = R[0]; self.rd = sum(R[1:], [])
        elif op.startswith("v_permlane"):
            self.kind = "valu"; self.wr = R[0] + R[1]; self.rd = R[0] + R[1]
        elif op.startswith("v_"):
            self.kind = "trans" if base in TRANS else ("dot" if base.startswith("v_dot") else "valu")
            self.wr = R[0]; self.rd = sum(R[1:], [])
            if base in RMW0: self.rd = self.rd + R[0]
            if base == "v_cndmask_b32" and len(ops) == 3: self.rd = self.rd + [("vcc", 0)]
            if base in ("v_add_co_u32", "v_sub_co_u32", "v_addc_co_u32"):
                self.wr = R[0] + R[1]; self.rd = sum(R[2:], [])
            if "sdwa" in op or "dst_sel" in mods: self.rd = self.rd + R[0]
        elif op.startswith("ds_read") or op.startswith("ds_bpermute") or op.startswith("ds_swizzle") or op.startswith("ds_permute"):
            self.kind = "ds"; self.wr = R[0]; self.rd = sum(R[1:], [])
        elif op.startswith("ds_"):
            self.kind = "ds"; self.rd = sum(R, [])
        elif op.startswith("buffer_load") or op.startswith("global_load"):
            self.kind = "vmem"
            if re.search(r"\blds\b", mods) or "_lds_" in op:
                self.lds_dma = True; self.rd = sum(R, []) + [("m0", 0)]
            else:
                self.wr = R[0]; self.rd = sum(R[1:], [])
        elif op.startswith("buffer_store") or op.startswith("global_store"):
            self.kind = "vmem"; self.rd = sum(R, [])
            if "x4" in op or "x3" in op:
                self.wide_store = True
                self.dst = R[0] if op.startswith("buffer") else R[1]
        elif op.startswith("buffer_atomic") or op.startswith("global_atomic"):
            self.kind = "vmem"; self.rd = sum(R, [])
            if "sc0" in mods: self.wr = R[0]
        elif op.startswith("buffer_") :
            self.kind = "vmem"
        elif op.startswith("s_"):
            self.kind = "salu"
            if op.startswith(("s_cmp", "s_cbranch", "s_branch", "s_waitcnt", "s_barrier", "s_nop", "s_endpgm", "s_setprio", "s_sleep", "s_bitcmp")):
                self.rd = sum(R, [])
            else:
                self.wr = R[0] if R else []; self.rd = sum(R[1:], [])
                if "saveexec" in op: self.wr = self.wr + [("exec", 0)]
        else:
            raise ValueError("unknown op: " + text)

    def states(self):
        if self.op == "s_nop":
            return int(self.text.split()[1]) + 1
        return 1

def _ov(a, b):
    return bool(set(a) & set(b))
def _isv(r): return r[0] in ("v", "a")
def _iss(r): return r[0] in ("s", "vcc")

def need(prev, cur):
    n = 0
    pk, ck = prev.kind, cur.kind
    p_valu = pk in ("valu", "trans", "dot")
    c_valu = ck in ("valu", "trans", "dot")
    pw_v = [r for r in prev.wr if _isv(r)]
    pw_s = [r for r in prev.wr if _iss(r)]
    if p_valu:
        if ck == "mfma" and _ov(pw_v, cur.rd): n = max(n, 2)
        if pw_s:
            if ck == "vmem" and _ov(pw_s, cur.rd): n = max(n, 5)
            if c_valu and _ov(pw_s, cur.rd): n = max(n, 2)
            if c_valu and cur.op.startswith(("v_readlane", "v_writelane")) and _ov(pw_s, cur.rd): n = max(n, 4)
            if ck == "salu" and _ov(pw_s, cur.rd): n = max(n, 1)
            if ck == "mfma" and _ov(pw_s, cur.rd): n = max(n, 2)
        if cur.op.startswith(("v_readfirstlane", "v_readlane")) and _ov(pw_v, cur.rd): n = max(n, 1)
        if cur.op.startswith("v_permlane") and _ov(pw_v, cur.rd): n = max(n, 2)
        if pk == "trans" and (c_valu and ck != "trans" or ck in ("vmem", "ds")) and _ov(pw_v, cur.rd): n = max(n, 1)
        if pk == "dot":
            if ck == "dot" and cur.op == prev.op:
                srcs = [r for r in cur.rd if r not in cur.wr]
                if _ov(pw_v, srcs): n = max(n, 3)
            elif _ov(pw_v, cur.rd) or _ov(pw_v, cur.wr): n = max(n, 3)
        if ("exec", 0) in prev.wr:
            if ck == "mfma": n = max(n, 4)
            if c_valu: n = max(n, 4 if cur.op.startswith(("v_read", "v_perm")) else 0)
    if pk == "mfma":
        P = prev.passes
        full = {4: 8, 8: 12, 16: 20}[P]
        ovl = {4: 6, 8: 10, 16: 18}[P]
        if ck == "mfma":
            if _ov(prev.dst, cur.srcab): n = max(n, full)
            if _ov(prev.dst, cur.srcc):
                if prev.dst == cur.srcc and prev.passes == cur.passes: pass
                else: n = max(n, ovl)
            elif _ov(prev.dst, cur.dst) and prev.dst != cur.dst:
                n = max(n, ovl)
            if prev.dst == cur.dst and not cur.srcc: n = max(n, ovl)
        elif c_valu or ck in ("vmem", "ds"):
            if _ov(prev.dst, cur.rd) or _ov(prev.dst, cur.wr): n = max(n, full)
            if c_valu and _ov(prev.srcc, cur.wr): n = max(n, {4: 3, 8: 7, 16: 15}[P])
    if pk == "salu" and ("m0", 0) in prev.wr and cur.lds_dma: n = max(n, 1)
    if prev.wide_store and c_valu and _ov(prev.dst, cur.wr): n = max(n, 2)
    if prev.wide_store and ck in ("ds", "vmem") and _ov(prev.dst, cur.wr): n = max(n, 1)
    return n

WINDOW = 24

class Asm:
    def __init__(self):
        self.items = []
    def e(self, text):
        for line in text.strip().split("\n"):
            line = line.strip()
            if not line or line.startswith(";"):
                if line: self.items.append(("r", "  " + line))
                continue
            if line.endswith(":"):
                self.items.append(("l", line[:-1]))
            else:
                self.items.append(("i", Ins(line)))
    def label(self, name): self.items.append(("l", name))
    def raw(self, text): self.items.append(("r", text))
    def comment(self, text): self.items.append(("r", "  ; " + text))

    @staticmethod
    def _req(window, cur):
        dist = 0; req = 0
        for p in reversed(window):
            n = need(p, cur)
            if n > dist: req = max(req, n - dist)
            dist += p.states()
            if dist > WINDOW: break
        return req

    def finalize(self):
        out = []
        labels = {}
        for idx, it in enumerate(self.items):
            if it[0] == "l": labels[it[1]] = idx
        window = []
        def pad(n):
            while n > 0:
                k = min(n, 16)
                ins = Ins(f"s_nop {k-1}")
                out.append(("i", ins)); window.append(ins); n -= k
        for idx, it in enumerate(self.items):
            if it[0] != "i":
                out.append(it);
                continue
            cur = it[1]
            pad(self._req(window, cur))
            if cur.op.startswith(("s_cbranch", "s_branch")):
                tgt = cur.text.split()[1]
                if tgt in labels:
                    w = window + [cur]
                    extra = 0
                    j = labels[tgt]; cnt = 0; sim = list(w);
                    while j < len(self.items) and cnt < WINDOW:
                        nx = self.items[j]; j += 1
                        if nx[0] != "i": continue
                        r = self._req(sim, nx[1])
                        if r > 0:
                            extra += r
                            sim.append(Ins(f"s_nop {min(r,16)-1}"))
                        sim.append(nx[1]); cnt += nx[1].states()
                        if nx[1].op in ("s_branch", "s_endpgm"): break
                    if extra:
                        pad(extra)
            out.append(it); window.append(cur)
            if cur.op in ("s_branch", "s_endpgm"):
                window = []
            window = window[-40:]
        return out

    def text(self):
        s = []
        for it in self.finalize():
            if it[0] == "i": s.append("  " + it[1].text)
            elif it[0] == "l": s.append(it[1] + ":")
            else: s.append(it[1])
        return "\n".join(s) + "\n"

def vr(b, n=1):
    return f"v{b}" if n == 1 else f"v[{b}:{b+n-1}]"
def ar(b, n=1):
    return f"a{b}" if n == 1 else f"a[{b}:{b+n-1}]"
def sr(b, n=1):
    return f"s{b}" if n == 1 else f"s[{b}:{b+n-1}]"

class RA:
    def __init__(self, start=0, limit=256): self.n = start; self.limit = limit; self.names = {}
    def __call__(self, cnt=1, align=1, name=None):
        self.n = (self.n + align - 1) // align * align
        b = self.n; self.n += cnt
        assert self.n <= self.limit, f"out of registers ({self.n} > {self.limit})"
        if name: self.names[name] = (b, cnt)
        return b
```

```python
import sys, math, struct
sys.path.insert(0, "gen")
from asmlib import Asm, RA, vr, ar, sr

NAME = "interleave_layers__mha_block__dense_activation_gelu__prompt"
MB = 1 << 20
S, D, H, DH, F = 2048, 448, 16, 28, 1792
OFF_Q, OFF_K, OFF_V, OFF_O, OFF_X1, OFF_H, OFF_X2 = 0, 2*MB, 4*MB, 6*MB, 8*MB, 10*MB, 17*MB
LSTRIDE = 20*MB
TT_BYTES = 28 * 1024
KA = dict(x=0, wqkv=8, wo=16, bx=24, w1=32, b1=40, w2=48, b2=56, out=64, dbg=72, ws=80)
MFMA = "v_mfma_f32_32x32x16_bf16"

def f32(x): return struct.unpack("<I", struct.pack("<f", x))[0]
def hx(x): return f"0x{x & 0xffffffff:x}"

def srd(a, base, lo, hi, off, nrec):
    a.e(f"s_add_u32 s{base}, s{lo}, {off}")
    a.e(f"s_addc_u32 s{base+1}, s{hi}, 0")
    a.e(f"s_and_b32 s{base+1}, s{base+1}, 0xffff")
    a.e(f"s_mov_b32 s{base+2}, {nrec}")
    a.e(f"s_mov_b32 s{base+3}, 0x20000")

def half_sum(a, v, t):
    a.e(f"v_mov_b32 v{t}, v{v}")
    a.e(f"v_permlane32_swap_b32 v{v}, v{t}")
    a.e(f"v_add_f32 v{v}, v{v}, v{t}")

def split_pk(a, dst, src, t):
    a.e(f"v_cvt_pk_bf16_f32 v{t}, v{src}, v{src}")
    a.e(f"v_and_b32 v{t}, 0xffff0000, v{t}")
    a.e(f"v_sub_f32 v{t}, v{src}, v{t}")
    a.e(f"v_cvt_pk_bf16_f32 v{dst}, v{src}, v{t}")

def split_dup(a, dhi, dlo, src, t):
    a.e(f"v_cvt_pk_bf16_f32 v{dhi}, v{src}, v{src}")
    a.e(f"v_and_b32 v{t}, 0xffff0000, v{dhi}")
    a.e(f"v_sub_f32 v{t}, v{src}, v{t}")
    a.e(f"v_cvt_pk_bf16_f32 v{dlo}, v{t}, v{t}")

def wave_id(a, sW, vT):
    a.e(f"v_lshrrev_b32 v{vT}, 6, v0")
    a.e(f"v_readfirstlane_b32 s{sW}, v{vT}")

WBASE = 1024
WBYTES = 28 * 4096
DUMMY = WBASE + WBYTES
T1_LDS = DUMMY + 4096
ACOL = [0, 1, 0, 1, 0, 1, 2]

def t1_kernel(a, mode):
    NT = 3 if mode == "qkv" else 4
    P = mode
    v = RA(1)
    vLane = v(); vH = v(); vXoff = v(); vWsrc = v(); vT0 = v(); vT1 = v(); vT2 = v(); vT3 = v()
    vA = [v() for _ in range(4)]
    vSx = v(); vSxx = v(); vC = [v() for _ in range(3)]
    vB = [v() for _ in range(4)]
    vR = v(); vMu = v()
    vX = v(28, 4)
    vAf = [v(16, 4), v(16, 4), v(16, 4)]
    vAcc = v(64, 4)
    vE = v(32, 4)
    nv = v.n
    sX, sW, sO, sBi = 4, 8, 12, 44
    sWv, sRb, sCb, sTT, sXo, sXs, sWo, sM0, sIt, sOnes = 16, 17, 18, 19, 20, 21, 22, 23, 24, 25
    sT, sT2 = 34, 35
    sHi = 36
    sPadM = 38
    sDum = 40
    nwg = 256 if mode == "qkv" else 224
    a.e(f"s_cmp_ge_u32 s2, {nwg}")
    a.e(f"s_cbranch_scc1 L_{P}_end")
    a.e(f"s_load_dwordx2 s[26:27], s[0:1], {KA['x']}")
    a.e(f"s_load_dwordx2 s[28:29], s[0:1], {KA['wqkv'] if mode == 'qkv' else KA['w1']}")
    a.e(f"s_load_dwordx2 s[30:31], s[0:1], {KA['ws']}")
    if mode == "ffn1":
        a.e(f"s_load_dwordx2 s[32:33], s[0:1], {KA['b1']}")
    a.e(f"v_and_b32 v{vLane}, 63, v0")
    wave_id(a, sWv, vT0)
    a.e(f"v_lshrrev_b32 v{vH}, 5, v{vLane}")
    a.e(f"s_and_b32 s{sT}, s2, 7")
    a.e(f"s_lshr_b32 s{sT2}, s2, 3")
    if mode == "qkv":
        a.e(f"s_lshr_b32 s{sRb}, s{sT}, 1")
        a.e(f"s_lshl_b32 s{sRb}, s{sRb}, 2")
        a.e(f"s_and_b32 s{sCb}, s{sT2}, 3")
        a.e(f"s_add_u32 s{sRb}, s{sRb}, s{sCb}")
        a.e(f"s_and_b32 s{sCb}, s{sT}, 1")
        a.e(f"s_lshl_b32 s{sCb}, s{sCb}, 3")
        a.e(f"s_lshr_b32 s{sT2}, s{sT2}, 2")
        a.e(f"s_add_u32 s{sCb}, s{sCb}, s{sT2}")
    else:
        a.e(f"s_lshl_b32 s{sRb}, s{sT}, 1")
        a.e(f"s_and_b32 s{sCb}, s{sT2}, 1")
        a.e(f"s_add_u32 s{sRb}, s{sRb}, s{sCb}")
        a.e(f"s_lshr_b32 s{sCb}, s{sT2}, 1")
    a.e(f"s_lshl_b32 s{sTT}, s{sRb}, 2")
    a.e(f"s_add_u32 s{sTT}, s{sTT}, s{sWv}")
    a.e(f"s_mov_b32 s{sOnes}, 0x3f803f80")
    a.e(f"s_mov_b32 s{sHi}, 0")
    a.e(f"s_mov_b32 s{sHi+1}, -1")
    a.e(f"v_lshrrev_b32 v{vT0}, 4, v{vLane}")
    a.e(f"v_and_b32 v{vT1}, 15, v{vLane}")
    a.e(f"v_lshlrev_b32 v{vT2}, 2, v{vT0}")
    a.e(f"v_xor_b32 v{vT1}, v{vT1}, v{vT2}")
    wrow = 2688 if mode == "qkv" else 3584
    a.e(f"s_mov_b32 s{sT}, s{sWv}")
    if mode == "qkv":
        a.e(f"s_cmp_eq_u32 s3, 0")
        a.e(f"s_cbranch_scc0 L_{P}_nopi")
        a.e(f"s_lshr_b32 s{sT}, s{sWv}, 1")
        a.e(f"s_and_b32 s{sT2}, s{sWv}, 1")
        a.e(f"s_lshl_b32 s{sT2}, s{sT2}, 1")
        a.e(f"s_or_b32 s{sT}, s{sT}, s{sT2}")
        a.label(f"L_{P}_nopi")
    a.e(f"s_lshl_b32 s{sT}, s{sT}, 2")
    a.e(f"v_add_u32 v{vT0}, s{sT}, v{vT0}")
    a.e(f"s_mov_b32 s{sT2}, {wrow}")
    a.e(f"v_mul_lo_u32 v{vWsrc}, v{vT0}, s{sT2}")
    if mode == "qkv":
        a.e(f"v_lshrrev_b32 v{vT2}, 2, v{vT1}")
        a.e(f"v_and_b32 v{vT3}, 3, v{vT1}")
        a.e(f"v_lshlrev_b32 v{vT3}, 4, v{vT3}")
        a.e(f"v_add_u32 v{vWsrc}, v{vWsrc}, v{vT3}")
        a.e(f"v_mul_u32_u24 v{vT3}, 896, v{vT2}")
        a.e(f"v_add_u32 v{vWsrc}, v{vWsrc}, v{vT3}")
        a.e(f"s_mul_i32 s{sT}, s{sCb}, 56")
        a.e(f"v_add_u32 v{vWsrc}, s{sT}, v{vWsrc}")
        a.e(f"v_cmp_eq_u32 vcc, 3, v{vT2}")
        a.e(f"v_mov_b32 v{vT3}, 0x40000000")
        a.e(f"v_cndmask_b32 v{vWsrc}, v{vWsrc}, v{vT3}, vcc")
    else:
        a.e(f"v_lshlrev_b32 v{vT3}, 4, v{vT1}")
        a.e(f"v_add_u32 v{vWsrc}, v{vWsrc}, v{vT3}")
        a.e(f"s_lshl_b32 s{sT}, s{sCb}, 8")
        a.e(f"v_add_u32 v{vWsrc}, s{sT}, v{vWsrc}")
    a.e(f"v_bfe_u32 v{vT0}, v{vLane}, 2, 2")
    a.e(f"v_lshlrev_b32 v{vT1}, 2, v{vH}")
    a.e(f"v_add_u32 v{vT1}, v{vT1}, v{vT0}")
    a.e(f"v_lshlrev_b32 v{vT1}, 8, v{vT1}")
    a.e(f"v_and_b32 v{vT2}, 3, v{vLane}")
    a.e(f"v_lshlrev_b32 v{vT2}, 3, v{vT2}")
    a.e(f"v_add_u32 v{vT1}, v{vT1}, v{vT2}")
    a.e(f"v_bfe_u32 v{vT2}, v{vLane}, 4, 1")
    a.e(f"v_lshlrev_b32 v{vT2}, 5, v{vT2}")
    a.e(f"v_add_u32 v{vT1}, v{vT1}, v{vT2}")
    a.e(f"v_add_u32 v{vT1}, {WBASE}, v{vT1}")
    for u in range(NT):
        if mode == "qkv":
            a.e(f"v_xor_b32 v{vT2}, {u}, v{vT0}")
        else:
            a.e(f"s_add_u32 s{sT}, s{sWv}, {u}")
            a.e(f"s_and_b32 s{sT}, s{sT}, 3")
            a.e(f"v_xor_b32 v{vT2}, s{sT}, v{vT0}")
        a.e(f"v_lshlrev_b32 v{vT2}, 6, v{vT2}")
        a.e(f"v_add_u32 v{vA[u]}, v{vT1}, v{vT2}")
    a.e(f"v_and_b32 v{vT0}, 31, v{vLane}")
    a.e("s_waitcnt lgkmcnt(0)")
    a.e(f"s_mul_i32 s{sT}, s{sTT}, {TT_BYTES}")
    if mode == "qkv":
        a.e(f"s_cmp_eq_u32 s3, 0")
        a.e(f"s_cbranch_scc0 L_{P}_x1")
        a.e(f"v_mul_u32_u24 v{vXoff}, 896, v{vT0}")
        a.e(f"v_lshlrev_b32 v{vT1}, 4, v{vH}")
        a.e(f"v_add_u32 v{vXoff}, v{vXoff}, v{vT1}")
        a.e(f"s_mov_b32 s{sXs}, 32")
        srd(a, sX, 26, 27, f"s{sT}", TT_BYTES)
        a.e(f"s_branch L_{P}_xd")
        a.label(f"L_{P}_x1")
        a.e(f"v_lshlrev_b32 v{vXoff}, 4, v{vLane}")
        a.e(f"s_mov_b32 s{sXs}, 1024")
        a.e(f"s_add_u32 s{sT}, s{sT}, {OFF_X2}")
        srd(a, sX, 30, 31, f"s{sT}", TT_BYTES)
        a.label(f"L_{P}_xd")
    else:
        a.e(f"v_lshlrev_b32 v{vXoff}, 4, v{vLane}")
        a.e(f"s_mov_b32 s{sXs}, 1024")
        a.e(f"s_mul_i32 s{sT2}, s3, {LSTRIDE}")
        a.e(f"s_add_u32 s{sT}, s{sT}, s{sT2}")
        a.e(f"s_add_u32 s{sT}, s{sT}, {OFF_X1}")
        srd(a, sX, 30, 31, f"s{sT}", TT_BYTES)
    srd(a, sW, 28, 29, 0, 448 * wrow)
    if mode == "ffn1":
        srd(a, sBi, 32, 33, 0, F * 2)
        for u in range(4):
            a.e(f"s_add_u32 s{sT}, s{sWv}, {u}")
            a.e(f"s_and_b32 s{sT}, s{sT}, 3")
            a.e(f"s_lshl_b32 s{sT}, s{sT}, 5")
            a.e(f"s_lshl_b32 s{sT2}, s{sCb}, 7")
            a.e(f"s_add_u32 s{sT}, s{sT}, s{sT2}")
            a.e(f"v_add_lshl_u32 v{vT1}, s{sT}, v{vT0}, 1")
            a.e(f"buffer_load_ushort v{vB[u]}, v{vT1}, s[{sBi}:{sBi+3}], 0 offen")
    a.e(f"s_lshl_b32 s{sM0}, s{sWv}, 10")
    a.e(f"s_add_u32 s{sDum}, s{sM0}, {DUMMY}")
    a.e(f"s_add_u32 s{sM0}, s{sM0}, {WBASE}")
    a.e(f"s_mov_b32 s{sWo}, 0")
    a.e(f"s_mov_b32 s{sXo}, 0")
    def dma():
        a.e(f"s_min_u32 m0, s{sM0}, s{sDum}")
        a.e(f"s_add_u32 s{sM0}, s{sM0}, 4096")
        a.e(f"buffer_load_dwordx4 v{vWsrc}, s[{sW}:{sW+3}], s{sWo} offen lds")
        a.e(f"s_add_u32 s{sWo}, s{sWo}, {16*wrow}")
    def xload(j):
        a.e(f"buffer_load_dwordx4 {vr(vX+4*j,4)}, v{vXoff}, s[{sX}:{sX+3}], s{sXo} offen")
        a.e(f"s_add_u32 s{sXo}, s{sXo}, s{sXs}")
    for j in range(7): dma()
    for j in range(7):
        xload(j); dma()
    for i in range(16 * NT): a.e(f"v_mov_b32 v{vAcc+i}, 0")
    for r_ in [vSx, vSxx] + vC: a.e(f"v_mov_b32 v{r_}, 0")
    a.e(f"s_mov_b32 s{sIt}, 0")
    a.e("s_waitcnt vmcnt(14)")
    a.e("s_barrier")
    def areads(buf, j):
        for u in range(NT):
            a.e(f"ds_read_b64_tr_b16 {vr(vAf[buf]+4*u,2)}, v{vA[u]} offset:{j*4096}")
            a.e(f"ds_read_b64_tr_b16 {vr(vAf[buf]+4*u+2,2)}, v{vA[u]} offset:{j*4096+2048}")
    areads(0, 0)
    a.label(f"L_{P}_loop")
    a.e(f"s_cmp_ge_u32 s{sIt}, 3")
    a.e(f"s_cselect_b32 s{sX+2}, 0, s{sX+2}")
    a.e(f"s_cmp_ge_u32 s{sIt}, 2")
    a.e(f"s_cselect_b32 s{sW+2}, 0, s{sW+2}")
    for j in range(7):
        buf = ACOL[j]
        nbuf = ACOL[(j + 1) % 7]
        if j == 6:
            a.e("s_waitcnt vmcnt(12)")
            a.e("s_barrier")
            for u in range(NT): a.e(f"v_add_u32 v{vA[u]}, {7*4096}, v{vA[u]}")
            areads(nbuf, 0)
        else:
            a.e("s_waitcnt vmcnt(13)")
            areads(nbuf, j + 1)
        a.e(f"s_waitcnt lgkmcnt({2*NT})")
        xf = vr(vX + 4*j, 4)
        for u in range(NT):
            af = vr(vAf[buf] + 4*u, 4)
            acc = vr(vAcc + 16*u, 16)
            if mode == "qkv" and u == 2:
                a.e(f"{MFMA} {acc}, {xf}, {af}, {acc}")
            else:
                a.e(f"{MFMA} {acc}, {af}, {xf}, {acc}")
            if u == 0:
                for i in range(4): a.e(f"v_dot2c_f32_bf16 v{vSx}, s{sOnes}, v{vX+4*j+i}")
            if u == 1:
                for i in range(4): a.e(f"v_dot2c_f32_bf16 v{vSxx}, v{vX+4*j+i}, v{vX+4*j+i}")
            if mode == "qkv" or u == 0:
                cidx = u if mode == "qkv" else 0
                for i in range(4): a.e(f"v_dot2c_f32_bf16 v{vC[cidx]}, s{sOnes}, v{vAf[buf]+4*u+i}")
        xload(j); dma()
    a.e(f"s_add_u32 s{sIt}, s{sIt}, 1")
    a.e(f"s_cmp_lt_u32 s{sIt}, 4")
    a.e(f"s_cbranch_scc1 L_{P}_loop")
    a.e("s_waitcnt vmcnt(0) lgkmcnt(0)")
    half_sum(a, vSx, vT0)
    half_sum(a, vSxx, vT1)
    ncs = 3 if mode == "qkv" else 1
    for i in range(ncs): half_sum(a, vC[i], vT2)
    a.e(f"v_mul_f32 v{vMu}, {hx(f32(1.0/448))}, v{vSx}")
    a.e(f"v_mul_f32 v{vT0}, {hx(f32(1.0/448))}, v{vSxx}")
    a.e(f"v_fma_f32 v{vT0}, -v{vMu}, v{vMu}, v{vT0}")
    a.e(f"v_max_f32 v{vT0}, 0, v{vT0}")
    a.e(f"v_add_f32 v{vT0}, {hx(f32(1e-5))}, v{vT0}")
    a.e(f"v_rsq_f32 v{vR}, v{vT0}")
    a.e(f"v_mul_f32 v{vT1}, v{vT0}, v{vR}")
    a.e(f"v_sub_f32 v{vT2}, 0, v{vMu}")
    vBp = vE
    split_pk(a, vBp, vT2, vT3)
    a.e(f"v_mov_b32 v{vBp+1}, v{vBp}")
    split_pk(a, vBp + 2, vT1, vT3)
    a.e(f"v_mov_b32 v{vBp+3}, 0")
    for i in range(3):
        a.e(f"v_cndmask_b32 v{vBp+i}, v{vBp+i}, 0, s[{sHi}:{sHi+1}]") if False else None
    a.e(f"v_mov_b32 v{vT3}, 0")
    for i in range(3):
        a.e(f"v_cndmask_b32 v{vBp+i}, v{vBp+i}, v{vT3}, s[{sHi}:{sHi+1}]")
    vAp = vAf[0]
    if mode == "ffn1":
        a.e(f"v_and_b32 v{vT0}, 31, v{vLane}")
        a.e(f"s_lshl_b32 s{sT}, s{sWv}, 7")
        a.e(f"v_lshlrev_b32 v{vT0}, 2, v{vT0}")
        a.e(f"v_add_u32 v{vT1}, s{sT}, v{vT0}")
        a.e(f"ds_write_b32 v{vT1}, v{vC[0]}")
        a.e("s_waitcnt lgkmcnt(0)")
        a.e("s_barrier")
        cs = [vE + 4 + u for u in range(4)]
        for u in range(4):
            a.e(f"s_add_u32 s{sT}, s{sWv}, {u}")
            a.e(f"s_and_b32 s{sT}, s{sT}, 3")
            a.e(f"s_lshl_b32 s{sT}, s{sT}, 7")
            a.e(f"v_add_u32 v{vT1}, s{sT}, v{vT0}")
            a.e(f"ds_read_b32 v{cs[u]}, v{vT1}")
        a.e("s_waitcnt lgkmcnt(0)")
    else:
        cs = vC
    for u in range(NT):
        split_dup(a, vAp + 4*u, vAp + 4*u + 1, cs[u], vT3)
        if mode == "ffn1":
            a.e(f"v_lshl_or_b32 v{vAp+4*u+2}, v{vB[u]}, 16, v{vB[u]}")
        else:
            a.e(f"v_mov_b32 v{vAp+4*u+2}, 0")
        a.e(f"v_mov_b32 v{vAp+4*u+3}, 0")
    for u in range(NT):
        af = vr(vAp + 4*u, 4); acc = vr(vAcc + 16*u, 16); bf = vr(vBp, 4)
        if mode == "qkv" and u == 2:
            a.e(f"{MFMA} {acc}, {bf}, {af}, {acc}")
        else:
            a.e(f"{MFMA} {acc}, {af}, {bf}, {acc}")
    a.e(f"s_mul_i32 s{sT}, s3, {LSTRIDE}")
    if mode == "qkv":
        srd(a, sO, 30, 31, f"s{sT}", 6 * MB)
        a.e(f"v_and_b32 v{vT0}, 31, v{vLane}")
        a.e(f"s_lshl_b32 s{sT2}, s{sWv}, 7")
        a.e(f"v_lshl_add_u32 v{vT1}, v{vT0}, 2, s{sT2}")
        a.e(f"ds_write_b32 v{vT1}, v{vR}")
        a.e(f"v_lshl_add_u32 v{vT1}, v{vH}, 4, s{sT2}")
        a.e("s_waitcnt lgkmcnt(0)")
        vRR = vE + 16
        for q in range(4):
            a.e(f"ds_read_b128 {vr(vRR+4*q,4)}, v{vT1} offset:{32*q}")
        a.e(f"s_lshl_b32 s{sT}, s{sCb}, 6")
        a.e(f"s_add_u32 s{sT}, s{sT}, s{sTT}")
        a.e(f"s_lshl_b32 s{sT}, s{sT}, 11")
        a.e(f"v_lshlrev_b32 v{vXoff}, 4, v{vLane}")
        qs = math.log2(math.e) / math.sqrt(28.0)
        a.e(f"v_mul_f32 v{vT2}, {hx(f32(qs))}, v{vR}")
        q0, k0, v0 = vAcc, vAcc + 16, vAcc + 32
        for i in range(16): a.e(f"v_mul_f32 v{q0+i}, v{q0+i}, v{vT2}")
        for i in range(16): a.e(f"v_mul_f32 v{k0+i}, v{k0+i}, v{vR}")
        a.e(f"v_mul_f32 v{vT0}, v{q0}, v{k0}")
        for i in range(1, 12): a.e(f"v_fmac_f32 v{vT0}, v{q0+i}, v{k0+i}")
        a.e(f"v_mul_f32 v{vT1}, v{q0+12}, v{k0+12}")
        for i in range(13, 16): a.e(f"v_fmac_f32 v{vT1}, v{q0+i}, v{k0+i}")
        a.e(f"v_mov_b32 v{vT3}, 0")
        a.e(f"v_cndmask_b32 v{vT1}, v{vT1}, v{vT3}, s[{sHi}:{sHi+1}]")
        a.e(f"v_add_f32 v{vT0}, v{vT0}, v{vT1}")
        half_sum(a, vT0, vT1)
        a.e(f"v_sub_f32 v{vT0}, 0, v{vT0}")
        vP = vE
        for i in range(8): a.e(f"v_cvt_pk_bf16_f32 v{vP+i}, v{q0+2*i}, v{q0+2*i+1}")
        a.e(f"v_cvt_pk_bf16_f32 v{vT0}, v{vT0}, v{vT3}")
        a.e(f"v_cndmask_b32 v{vP+6}, v{vP+6}, v{vT0}, s[{sHi}:{sHi+1}]")
        a.e(f"v_cndmask_b32 v{vP+7}, v{vP+7}, v{vT3}, s[{sHi}:{sHi+1}]")
        a.e(f"buffer_store_dwordx4 {vr(vP,4)}, v{vXoff}, s[{sO}:{sO+3}], s{sT} offen")
        a.e(f"buffer_store_dwordx4 {vr(vP+4,4)}, v{vXoff}, s[{sO}:{sO+3}], s{sT} offen offset:1024")
        vP2 = vE + 8
        for i in range(8): a.e(f"v_cvt_pk_bf16_f32 v{vP2+i}, v{k0+2*i}, v{k0+2*i+1}")
        a.e(f"v_mov_b32 v{vT0}, 0x3f803f80")
        a.e(f"v_mov_b32 v{vT1}, 0x3f80")
        a.e(f"v_cndmask_b32 v{vP2+6}, v{vP2+6}, v{vT0}, s[{sHi}:{sHi+1}]")
        a.e(f"v_cndmask_b32 v{vP2+7}, v{vP2+7}, v{vT1}, s[{sHi}:{sHi+1}]")
        a.e(f"s_add_u32 s{sT2}, s{sT}, {OFF_K}")
        a.e(f"buffer_store_dwordx4 {vr(vP2,4)}, v{vXoff}, s[{sO}:{sO+3}], s{sT2} offen")
        a.e(f"buffer_store_dwordx4 {vr(vP2+4,4)}, v{vXoff}, s[{sO}:{sO+3}], s{sT2} offen offset:1024")
        a.e("s_waitcnt lgkmcnt(0)")
        for i in range(16): a.e(f"v_mul_f32 v{v0+i}, v{v0+i}, v{vRR+i}")
        a.e(f"v_and_b32 v{vT0}, 31, v{vLane}")
        a.e(f"v_cmp_le_u32 s[{sPadM}:{sPadM+1}], 28, v{vT0}")
        a.e(f"v_cmp_eq_u32 vcc, 28, v{vT0}")
        a.e(f"v_mov_b32 v{vT1}, 0x3f803f80")
        a.e(f"v_cndmask_b32 v{vT1}, v{vT3}, v{vT1}, vcc")
        vP3 = vAf[1]
        for i in range(8):
            a.e(f"v_cvt_pk_bf16_f32 v{vP3+i}, v{v0+2*i}, v{v0+2*i+1}")
        for i in range(8):
            a.e(f"v_cndmask_b32 v{vP3+i}, v{vP3+i}, v{vT1}, s[{sPadM}:{sPadM+1}]")
        a.e(f"s_add_u32 s{sT2}, s{sT}, {OFF_V}")
        a.e(f"buffer_store_dwordx4 {vr(vP3,4)}, v{vXoff}, s[{sO}:{sO+3}], s{sT2} offen")
        a.e(f"buffer_store_dwordx4 {vr(vP3+4,4)}, v{vXoff}, s[{sO}:{sO+3}], s{sT2} offen offset:1024")
    else:
        a.e(f"s_add_u32 s{sT}, s{sT}, {OFF_H}")
        srd(a, sO, 30, 31, f"s{sT}", 7 * MB)
        a.e(f"v_lshlrev_b32 v{vXoff}, 4, v{vLane}")
        ca = 2.0 * math.sqrt(2.0 / math.pi)
        l2e = math.log2(math.e)
        a.e(f"s_mov_b32 s41, {hx(f32(-l2e * ca))}")
        a.e(f"s_mov_b32 s42, {hx(f32(-l2e * ca * 0.044715))}")
        a.e(f"v_mov_b32 v{vT3}, s41")
        for u in range(4):
            acc = vAcc + 16*u
            t = vE + 8
            for i in range(16): a.e(f"v_mul_f32 v{acc+i}, v{acc+i}, v{vR}")
            for i in range(16): a.e(f"v_mul_f32 v{t+i}, v{acc+i}, v{acc+i}")
            for i in range(16): a.e(f"v_fma_f32 v{t+i}, v{t+i}, s42, v{vT3}")
            for i in range(16): a.e(f"v_mul_f32 v{t+i}, v{t+i}, v{acc+i}")
            for i in range(16): a.e(f"v_exp_f32 v{t+i}, v{t+i}")
            for i in range(16): a.e(f"v_add_f32 v{t+i}, 1.0, v{t+i}")
            for i in range(16): a.e(f"v_rcp_f32 v{t+i}, v{t+i}")
            for i in range(16): a.e(f"v_mul_f32 v{acc+i}, v{acc+i}, v{t+i}")
            pk = vAf[1] + 8 * (u & 1)
            for i in range(8): a.e(f"v_cvt_pk_bf16_f32 v{pk+i}, v{acc+2*i}, v{acc+2*i+1}")
            a.e(f"s_add_u32 s{sT}, s{sWv}, {u}")
            a.e(f"s_and_b32 s{sT}, s{sT}, 3")
            a.e(f"s_lshl_b32 s{sT2}, s{sCb}, 2")
            a.e(f"s_add_u32 s{sT}, s{sT}, s{sT2}")
            a.e(f"s_lshl_b32 s{sT}, s{sT}, 1")
            a.e(f"s_mul_i32 s{sT2}, s{sTT}, 112")
            a.e(f"s_add_u32 s{sT}, s{sT}, s{sT2}")
            a.e(f"s_lshl_b32 s{sT}, s{sT}, 10")
            a.e(f"buffer_store_dwordx4 {vr(pk,4)}, v{vXoff}, s[{sO}:{sO+3}], s{sT} offen")
            a.e(f"buffer_store_dwordx4 {vr(pk+4,4)}, v{vXoff}, s[{sO}:{sO+3}], s{sT} offen offset:1024")
    a.label(f"L_{P}_end")
    a.e("s_endpgm")
    return nv, 48, T1_LDS

def t2_kernel(a, mode):
    P = mode
    v = RA(1)
    vLane = v(); vH = v(); vT0 = v(); vT1 = v(); vT2 = v(); vT3 = v()
    vWsrc = v(); vBoff = v(); vA = [v(), v()]
    vRes = v(8, 4)
    vBias = v(8, 4)
    if mode == "wo":
        vBf = v(64, 4)
    else:
        vBf = v(56, 4)
    vAf = [v(8, 4), v(8, 4), v(8, 4)]
    vAcc = v(64, 4)
    vE = v(48, 4)
    nv = v.n
    sB, sW, sR, sO, sBi = 4, 8, 12, 44, 48
    sWv, sRb, sCb, sBo, sWo, sM0, sIt = 16, 17, 18, 20, 22, 23, 24
    sT, sT2, sTT, sFT = 34, 35, 36, 37
    sM0b = 38
    RING = 15 * 1024 if mode == "wo" else 14 * 1024
    RED = 4 * RING
    lds = RED + 16 * 4096
    a.e(f"s_cmp_ge_u32 s2, 224")
    a.e(f"s_cbranch_scc1 L_{P}_end")
    a.e(f"s_load_dwordx2 s[26:27], s[0:1], {KA['x']}")
    a.e(f"s_load_dwordx2 s[28:29], s[0:1], {KA['wo'] if mode == 'wo' else KA['w2']}")
    a.e(f"s_load_dwordx2 s[30:31], s[0:1], {KA['ws']}")
    if mode == "ffn2":
        a.e(f"s_load_dwordx2 s[32:33], s[0:1], {KA['b2']}")
        a.e(f"s_load_dwordx2 s[40:41], s[0:1], {KA['out']}")
    a.e(f"v_and_b32 v{vLane}, 63, v0")
    wave_id(a, sWv, vT0)
    a.e(f"v_lshrrev_b32 v{vH}, 5, v{vLane}")
    a.e(f"s_and_b32 s{sT}, s2, 7")
    a.e(f"s_lshr_b32 s{sT2}, s2, 3")
    a.e(f"s_lshl_b32 s{sRb}, s{sT}, 2")
    a.e(f"s_and_b32 s{sCb}, s{sT2}, 3")
    a.e(f"s_add_u32 s{sRb}, s{sRb}, s{sCb}")
    a.e(f"s_lshr_b32 s{sCb}, s{sT2}, 2")
    a.e(f"s_lshl_b32 s{sTT}, s{sRb}, 1")
    a.e(f"s_lshr_b32 s{sT}, s{sWv}, 1")
    a.e(f"s_add_u32 s{sTT}, s{sTT}, s{sT}")
    a.e(f"s_lshl_b32 s{sFT}, s{sCb}, 1")
    a.e(f"s_and_b32 s{sT}, s{sWv}, 1")
    a.e(f"s_add_u32 s{sFT}, s{sFT}, s{sT}")
    a.e(f"v_lshrrev_b32 v{vT0}, 3, v{vLane}")
    a.e(f"v_and_b32 v{vT1}, 7, v{vLane}")
    a.e(f"v_bfe_u32 v{vT2}, v{vLane}, 4, 1")
    a.e(f"v_lshlrev_b32 v{vT2}, 2, v{vT2}")
    a.e(f"v_xor_b32 v{vT1}, v{vT1}, v{vT2}")
    a.e(f"v_mul_u32_u24 v{vWsrc}, 896, v{vT0}")
    a.e(f"v_lshlrev_b32 v{vT1}, 4, v{vT1}")
    a.e(f"v_add_u32 v{vWsrc}, v{vWsrc}, v{vT1}")
    a.e(f"s_lshl_b32 s{sT}, s{sCb}, 7")
    a.e(f"v_add_u32 v{vWsrc}, s{sT}, v{vWsrc}")
    a.e(f"v_bfe_u32 v{vT0}, v{vLane}, 2, 2")
    a.e(f"v_lshlrev_b32 v{vT1}, 2, v{vH}")
    a.e(f"v_add_u32 v{vT1}, v{vT1}, v{vT0}")
    a.e(f"v_lshlrev_b32 v{vT1}, 7, v{vT1}")
    a.e(f"v_and_b32 v{vT2}, 3, v{vLane}")
    a.e(f"v_lshlrev_b32 v{vT2}, 3, v{vT2}")
    a.e(f"v_add_u32 v{vT1}, v{vT1}, v{vT2}")
    a.e(f"v_bfe_u32 v{vT2}, v{vLane}, 4, 1")
    a.e(f"v_lshlrev_b32 v{vT2}, 5, v{vT2}")
    a.e(f"v_add_u32 v{vT1}, v{vT1}, v{vT2}")
    a.e(f"v_bfe_u32 v{vT2}, v{vLane}, 3, 1")
    a.e(f"v_lshlrev_b32 v{vT2}, 6, v{vT2}")
    a.e(f"s_mul_i32 s{sM0}, s{sWv}, {RING}")
    a.e(f"v_add_u32 v{vT1}, s{sM0}, v{vT1}")
    a.e(f"v_add_u32 v{vA[0]}, v{vT1}, v{vT2}")
    a.e(f"v_xor_b32 v{vT2}, 64, v{vT2}")
    a.e(f"v_add_u32 v{vA[1]}, v{vT1}, v{vT2}")
    a.e(f"v_lshlrev_b32 v{vBoff}, 4, v{vLane}")
    a.e("s_waitcnt lgkmcnt(0)")
    a.e(f"s_mul_i32 s{sT2}, s3, {LSTRIDE}")
    if mode == "wo":
        a.e(f"s_cmp_eq_u32 s3, 0")
        a.e(f"s_cbranch_scc0 L_{P}_r1")
        a.e(f"s_mul_i32 s{sT}, s{sTT}, {TT_BYTES}")
        srd(a, sR, 26, 27, f"s{sT}", TT_BYTES)
        a.e(f"v_and_b32 v{vT0}, 31, v{vLane}")
        a.e(f"v_mul_u32_u24 v{vT0}, 896, v{vT0}")
        a.e(f"v_lshl_add_u32 v{vT0}, v{vH}, 3, v{vT0}")
        a.e(f"s_lshl_b32 s{sT}, s{sFT}, 6")
        for q in range(4):
            a.e(f"buffer_load_dwordx2 {vr(vRes+2*q,2)}, v{vT0}, s[{sR}:{sR+3}], s{sT} offen offset:{16*q}")
        a.e(f"s_branch L_{P}_rd")
        a.label(f"L_{P}_r1")
        a.e(f"s_mul_i32 s{sT}, s{sTT}, {TT_BYTES}")
        a.e(f"s_add_u32 s{sT}, s{sT}, {OFF_X2}")
        srd(a, sR, 30, 31, f"s{sT}", TT_BYTES)
        a.e(f"s_lshl_b32 s{sT}, s{sFT}, 11")
        a.e(f"buffer_load_dwordx4 {vr(vRes,4)}, v{vBoff}, s[{sR}:{sR+3}], s{sT} offen")
        a.e(f"buffer_load_dwordx4 {vr(vRes+4,4)}, v{vBoff}, s[{sR}:{sR+3}], s{sT} offen offset:1024")
        a.label(f"L_{P}_rd")
    else:
        a.e(f"s_mul_i32 s{sT}, s{sTT}, {TT_BYTES}")
        a.e(f"s_add_u32 s{sT}, s{sT}, s{sT2}")
        a.e(f"s_add_u32 s{sT}, s{sT}, {OFF_X1}")
        srd(a, sR, 30, 31, f"s{sT}", TT_BYTES)
        a.e(f"s_lshl_b32 s{sT}, s{sFT}, 11")
        a.e(f"buffer_load_dwordx4 {vr(vRes,4)}, v{vBoff}, s[{sR}:{sR+3}], s{sT} offen")
        a.e(f"buffer_load_dwordx4 {vr(vRes+4,4)}, v{vBoff}, s[{sR}:{sR+3}], s{sT} offen offset:1024")
        srd(a, sBi, 32, 33, 0, D * 2)
        a.e(f"v_lshlrev_b32 v{vT0}, 3, v{vH}")
        a.e(f"s_lshl_b32 s{sT}, s{sFT}, 6")
        for q in range(4):
            a.e(f"buffer_load_dwordx2 {vr(vBias+2*q,2)}, v{vT0}, s[{sBi}:{sBi+3}], s{sT} offen offset:{16*q}")
    srd(a, sW, 28, 29, 0, (448 if mode == "wo" else 1792) * 896)
    for i in range(64): a.e(f"v_mov_b32 v{vAcc+i}, 0")
    def areads(buf, off):
        for t in range(2):
            a.e(f"ds_read_b64_tr_b16 {vr(vAf[buf]+4*t,2)}, v{vA[t]} offset:{off}")
            a.e(f"ds_read_b64_tr_b16 {vr(vAf[buf]+4*t+2,2)}, v{vA[t]} offset:{off+1024}")
    def mfmas(buf, b0, b1):
        for tt in range(2):
            for t in range(2):
                acc = vr(vAcc + 16*(2*tt+t), 16)
                a.e(f"{MFMA} {acc}, {vr(vAf[buf]+4*t,4)}, {vr((b0,b1)[tt],4)}, {acc}")
    if mode == "wo":
        a.e(f"s_add_u32 s{sT}, s{sT2}, {OFF_O}")
        srd(a, sB, 30, 31, f"s{sT}", 2 * MB)
        a.e(f"s_lshl_b32 s{sBo}, s{sRb}, 1")
        a.e(f"s_lshl_b32 s{sBo}, s{sBo}, 15")
        a.e(f"s_lshl_b32 s{sT}, s{sWv}, 13")
        a.e(f"s_add_u32 s{sBo}, s{sBo}, s{sT}")
        a.e(f"s_mul_i32 s{sWo}, s{sWv}, {112*896}")
        nd = 0
        def dma1():
            a.e(f"s_mov_b32 m0, s{sM0}")
            a.e(f"s_add_u32 s{sM0}, s{sM0}, 1024")
            a.e(f"buffer_load_dwordx4 v{vWsrc}, s[{sW}:{sW+3}], s{sWo} offen lds")
            a.e(f"s_add_u32 s{sWo}, s{sWo}, {8*896}")
        order = []
        dcount = [4, 4, 4, 3]
        for hh in range(4):
            for _ in range(dcount[hh]): dma1(); order.append("d")
            for s_ in range(2):
                for tt in range(2):
                    reg = vBf + 16*hh + 8*s_ + 4*tt
                    off = hh*2048 + s_*1024
                    if tt == 0:
                        a.e(f"s_add_u32 s{sT}, s{sBo}, {off}")
                    else:
                        a.e(f"s_add_u32 s{sT}, s{sBo}, {off + 32768}")
                    a.e(f"buffer_load_dwordx4 {vr(reg,4)}, v{vBoff}, s[{sB}:{sB+3}], s{sT} offen")
                    order.append("o")
        total = len(order)
        done = 0
        steps = [(hh, s_) for hh in range(4) for s_ in range(2)]
        for idx, (hh, s_) in enumerate(steps):
            if s_ == 0:
                done += dcount[hh] + 4
                a.e(f"s_waitcnt vmcnt({total - done})")
                areads(idx & 1, (28*hh) * 128)
            nxt = steps[idx + 1] if idx + 1 < len(steps) else None
            if nxt and nxt[1] == 1:
                areads((idx + 1) & 1, (28*nxt[0] + 16) * 128)
                a.e("s_waitcnt lgkmcnt(4)")
            else:
                a.e("s_waitcnt lgkmcnt(0)")
            mfmas(idx & 1, vBf + 16*hh + 8*s_, vBf + 16*hh + 8*s_ + 4)
    else:
        a.e(f"s_add_u32 s{sT}, s{sT2}, {OFF_H}")
        srd(a, sB, 30, 31, f"s{sT}", 7 * MB)
        a.e(f"s_lshl_b32 s{sBo}, s{sRb}, 1")
        a.e(f"s_mul_i32 s{sBo}, s{sBo}, 112")
        a.e(f"s_mul_i32 s{sT}, s{sWv}, 28")
        a.e(f"s_add_u32 s{sBo}, s{sBo}, s{sT}")
        a.e(f"s_lshl_b32 s{sBo}, s{sBo}, 10")
        a.e(f"s_mul_i32 s{sWo}, s{sWv}, {448*896}")
        a.e(f"s_mov_b32 s{sM0b}, s{sM0}")
        def group(j):
            a.e(f"buffer_load_dwordx4 {vr(vBf+8*j,4)}, v{vBoff}, s[{sB}:{sB+3}], s{sBo} offen")
            a.e(f"s_add_u32 s{sT}, s{sBo}, {112*1024}")
            a.e(f"buffer_load_dwordx4 {vr(vBf+8*j+4,4)}, v{vBoff}, s[{sB}:{sB+3}], s{sT} offen")
            a.e(f"s_add_u32 s{sBo}, s{sBo}, 1024")
            for h2 in range(2):
                a.e(f"s_add_u32 m0, s{sM0b}, {j*2048 + h2*1024}")
                a.e(f"s_nop 0")
                a.e(f"buffer_load_dwordx4 v{vWsrc}, s[{sW}:{sW+3}], s{sWo} offen lds")
                a.e(f"s_add_u32 s{sWo}, s{sWo}, {8*896}")
        for j in range(7): group(j)
        a.e(f"s_mov_b32 s{sIt}, 0")
        a.e("s_waitcnt vmcnt(24)")
        areads(0, 0)
        a.label(f"L_{P}_loop")
        a.e(f"s_cmp_ge_u32 s{sIt}, 3")
        a.e(f"s_cselect_b32 s{sB+2}, 0, s{sB+2}")
        a.e(f"s_cselect_b32 s{sW+2}, 0, s{sW+2}")
        for j in range(7):
            a.e("s_waitcnt vmcnt(20)")
            areads(ACOL[(j + 1) % 7], ((j + 1) % 7) * 2048)
            a.e("s_waitcnt lgkmcnt(4)")
            mfmas(ACOL[j], vBf + 8*j, vBf + 8*j + 4)
            group(j)
        a.e(f"s_add_u32 s{sIt}, s{sIt}, 1")
        a.e(f"s_cmp_lt_u32 s{sIt}, 4")
        a.e(f"s_cbranch_scc1 L_{P}_loop")
    a.e("s_waitcnt vmcnt(0) lgkmcnt(0)")
    a.e(f"s_lshl_b32 s{sT}, s{sWv}, 12")
    a.e(f"s_add_u32 s{sT}, s{sT}, {RED}")
    a.e(f"v_lshl_add_u32 v{vT0}, v{vLane}, 4, s{sT}")
    for t in range(4):
        for q in range(4):
            a.e(f"ds_write_b128 v{vT0}, {vr(vAcc+16*t+4*q,4)} offset:{t*16384 + q*1024}")
    a.e("s_waitcnt lgkmcnt(0)")
    a.e("s_barrier")
    a.e(f"s_lshl_b32 s{sT}, s{sWv}, 14")
    a.e(f"s_add_u32 s{sT}, s{sT}, {RED}")
    a.e(f"v_lshl_add_u32 v{vT0}, v{vLane}, 4, s{sT}")
    for w in range(4):
        for q in range(4):
            a.e(f"ds_read_b128 {vr(vAcc+16*w+4*q,4)}, v{vT0} offset:{w*4096 + q*1024}")
    a.e("s_waitcnt lgkmcnt(0)")
    for i in range(16):
        a.e(f"v_add_f32 v{vAcc+i}, v{vAcc+i}, v{vAcc+16+i}")
        a.e(f"v_add_f32 v{vAcc+32+i}, v{vAcc+32+i}, v{vAcc+48+i}")
    for i in range(16):
        a.e(f"v_add_f32 v{vAcc+i}, v{vAcc+i}, v{vAcc+32+i}")
    def unpack_add(src):
        for i in range(8):
            a.e(f"v_lshlrev_b32 v{vT0}, 16, v{src+i}")
            a.e(f"v_and_b32 v{vT1}, 0xffff0000, v{src+i}")
            a.e(f"v_add_f32 v{vAcc+2*i}, v{vAcc+2*i}, v{vT0}")
            a.e(f"v_add_f32 v{vAcc+2*i+1}, v{vAcc+2*i+1}, v{vT1}")
    if mode == "ffn2": unpack_add(vBias)
    unpack_add(vRes)
    for i in range(8): a.e(f"v_cvt_pk_bf16_f32 v{vE+i}, v{vAcc+2*i}, v{vAcc+2*i+1}")
    a.e(f"s_mul_i32 s{sT}, s{sTT}, {TT_BYTES}")
    if mode == "ffn2":
        a.e(f"s_cmp_eq_u32 s3, 1")
        a.e(f"s_cbranch_scc1 L_{P}_final")
    a.e(f"s_mul_i32 s{sT2}, s3, {LSTRIDE}")
    a.e(f"s_add_u32 s{sT}, s{sT}, s{sT2}")
    a.e(f"s_add_u32 s{sT}, s{sT}, {OFF_X1 if mode == 'wo' else OFF_X2}")
    srd(a, sO, 30, 31, f"s{sT}", TT_BYTES)
    a.e(f"s_lshl_b32 s{sT}, s{sFT}, 11")
    a.e(f"buffer_store_dwordx4 {vr(vE,4)}, v{vBoff}, s[{sO}:{sO+3}], s{sT} offen")
    a.e(f"buffer_store_dwordx4 {vr(vE+4,4)}, v{vBoff}, s[{sO}:{sO+3}], s{sT} offen offset:1024")
    if mode == "ffn2":
        a.e("s_endpgm")
        a.label(f"L_{P}_final")
        srd(a, sO, 40, 41, f"s{sT}", TT_BYTES)
        a.e(f"v_permlane32_swap_b32 v{vE}, v{vE+2}")
        a.e(f"v_permlane32_swap_b32 v{vE+1}, v{vE+3}")
        a.e(f"v_permlane32_swap_b32 v{vE+4}, v{vE+6}")
        a.e(f"v_permlane32_swap_b32 v{vE+5}, v{vE+7}")
        a.e(f"v_and_b32 v{vT0}, 31, v{vLane}")
        a.e(f"v_mul_u32_u24 v{vT0}, 896, v{vT0}")
        a.e(f"v_lshl_add_u32 v{vT0}, v{vH}, 4, v{vT0}")
        a.e(f"s_lshl_b32 s{sT}, s{sFT}, 6")
        a.e(f"buffer_store_dwordx4 {vr(vE,4)}, v{vT0}, s[{sO}:{sO+3}], s{sT} offen")
        a.e(f"buffer_store_dwordx4 {vr(vE+4,4)}, v{vT0}, s[{sO}:{sO+3}], s{sT} offen offset:32")
    a.label(f"L_{P}_end")
    a.e("s_endpgm")
    return nv, 56, lds

def att_kernel(a):
    P = "att"
    v = RA(1)
    vLane = v(); vH = v(); vOff = v(); vT0 = v(); vT1 = v(); vT2 = v(); vT3 = v()
    vQ = v(32, 4)
    vKV = v(64, 4)
    vS = [v(16, 4), v(16, 4)]
    vP = [v(8, 4), v(8, 4)]
    vO = v(64, 4)
    vE = v(16, 4)
    nv = v.n
    sQ, sOo = 4, 12
    sWv, sHead, sQb, sKo, sIt, sT, sT2, sQo = 16, 17, 18, 20, 24, 34, 35, 38
    sHi = 36
    RED = 0
    lds = 16 * 4096
    a.e(f"s_cmp_ge_u32 s2, 256")
    a.e(f"s_cbranch_scc1 L_{P}_end")
    a.e(f"s_load_dwordx2 s[30:31], s[0:1], {KA['ws']}")
    a.e(f"v_and_b32 v{vLane}, 63, v0")
    wave_id(a, sWv, vT0)
    a.e(f"v_lshrrev_b32 v{vH}, 5, v{vLane}")
    a.e(f"v_lshlrev_b32 v{vOff}, 4, v{vLane}")
    a.e(f"s_and_b32 s{sHead}, s2, 15")
    a.e(f"s_lshr_b32 s{sQb}, s2, 4")
    a.e(f"s_mov_b32 s{sHi}, 0")
    a.e(f"s_mov_b32 s{sHi+1}, -1")
    a.e("s_waitcnt lgkmcnt(0)")
    a.e(f"s_mul_i32 s{sT}, s3, {LSTRIDE}")
    srd(a, sQ, 30, 31, f"s{sT}", 6 * MB)
    a.e(f"s_add_u32 s{sT}, s{sT}, {OFF_O}")
    srd(a, sOo, 30, 31, f"s{sT}", 2 * MB)
    a.e(f"s_lshl_b32 s{sKo}, s{sHead}, 6")
    a.e(f"s_lshl_b32 s{sT2}, s{sWv}, 4")
    a.e(f"s_add_u32 s{sKo}, s{sKo}, s{sT2}")
    a.e(f"s_lshl_b32 s{sKo}, s{sKo}, 11")
    a.e(f"s_add_u32 s{sKo}, s{sKo}, {OFF_K}")
    a.e(f"s_lshl_b32 s{sQo}, s{sHead}, 6")
    a.e(f"s_lshl_b32 s{sT2}, s{sQb}, 2")
    a.e(f"s_add_u32 s{sQo}, s{sQo}, s{sT2}")
    a.e(f"s_lshl_b32 s{sQo}, s{sQo}, 11")
    def kvload(slot, konly=False):
        b = vKV + 16*slot
        a.e(f"buffer_load_dwordx4 {vr(b,4)}, v{vOff}, s[{sQ}:{sQ+3}], s{sKo} offen")
        a.e(f"buffer_load_dwordx4 {vr(b+4,4)}, v{vOff}, s[{sQ}:{sQ+3}], s{sKo} offen offset:1024")
        if not konly:
            a.e(f"s_add_u32 s{sT}, s{sKo}, {OFF_V - OFF_K}")
            a.e(f"buffer_load_dwordx4 {vr(b+8,4)}, v{vOff}, s[{sQ}:{sQ+3}], s{sT} offen")
            a.e(f"buffer_load_dwordx4 {vr(b+12,4)}, v{vOff}, s[{sQ}:{sQ+3}], s{sT} offen offset:1024")
        a.e(f"s_add_u32 s{sKo}, s{sKo}, 2048")
    for q in range(4):
        a.e(f"s_add_u32 s{sT}, s{sQo}, {q*2048}")
        for s_ in range(2):
            a.e(f"buffer_load_dwordx4 {vr(vQ+8*q+4*s_,4)}, v{vOff}, s[{sQ}:{sQ+3}], s{sT} offen offset:{s_*1024}")
    for slot in range(4): kvload(slot)
    for i in range(64): a.e(f"v_mov_b32 v{vO+i}, 0")
    a.e(f"s_mov_b32 s{sIt}, 0")
    def smf(u, slot, q):
        sb = vr(vS[u & 1], 16); b = vKV + 16*slot
        return [f"{MFMA} {sb}, {vr(b,4)}, {vr(vQ+8*q,4)}, 0",
                f"{MFMA} {sb}, {vr(b+4,4)}, {vr(vQ+8*q+4,4)}, {sb}"]
    def pvm(u, slot, q):
        b = vKV + 16*slot; o = vr(vO + 16*q, 16); p = vP[u & 1]
        return [f"{MFMA} {o}, {vr(b+8,4)}, {vr(p,4)}, {o}",
                f"{MFMA} {o}, {vr(b+12,4)}, {vr(p+4,4)}, {o}"]
    def softmax_valu(s0, p0):
        valu = []
        for i in range(8):
            valu.append(f"v_exp_f32 v{s0+2*i}, v{s0+2*i}")
            valu.append(f"v_exp_f32 v{s0+2*i+1}, v{s0+2*i+1}")
            if i >= 1:
                valu.append(f"v_cvt_pk_bf16_f32 v{p0+i-1}, v{s0+2*i-2}, v{s0+2*i-1}")
        valu.append(f"v_cvt_pk_bf16_f32 v{p0+7}, v{s0+14}, v{s0+15}")
        return valu
    def stream(u, first=False):
        u16 = u & 15
        un = (u + 1) & 15; nslot, nq = un >> 2, un & 3
        up = (u - 1) & 15; pslot, pq = up >> 2, up & 3
        if nq == 0:
            a.e("s_waitcnt vmcnt(8)")
        ms = smf(u + 1, nslot, nq)
        ps = pvm(u - 1, pslot, pq)
        valu = softmax_valu(vS[u & 1], vP[u & 1])
        mf = [ms[0], ps[0], ms[1], ps[1]]
        for i in range(4):
            if not (first and i in (1, 3)): a.e(mf[i])
            for s_ in valu[6*i: 6*i+6]: a.e(s_)
        if (u16 & 3) == 0 and not first:
            kvload(pslot)
    a.e("s_waitcnt vmcnt(12)")
    for m in smf(0, 0, 0): a.e(m)
    stream(0, first=True)
    a.label(f"L_{P}_loop")
    a.e(f"s_cmp_ge_u32 s{sIt}, 3")
    a.e(f"s_cselect_b32 s{sQ+2}, 0, s{sQ+2}")
    for u in range(1, 17): stream(u)
    a.e(f"s_add_u32 s{sIt}, s{sIt}, 1")
    a.e(f"s_cmp_lt_u32 s{sIt}, 4")
    a.e(f"s_cbranch_scc1 L_{P}_loop")
    a.e(f"s_mov_b32 s{sQ+2}, {6*MB}")
    a.e(f"s_lshl_b32 s{sT}, s{sWv}, 12")
    a.e(f"v_lshl_add_u32 v{vT0}, v{vLane}, 4, s{sT}")
    for t in range(4):
        for q in range(4):
            a.e(f"ds_write_b128 v{vT0}, {vr(vO+16*t+4*q,4)} offset:{t*16384 + q*1024}")
    a.e("s_waitcnt vmcnt(0) lgkmcnt(0)")
    a.e("s_barrier")
    a.e(f"s_lshl_b32 s{sT}, s{sWv}, 14")
    a.e(f"v_lshl_add_u32 v{vT0}, v{vLane}, 4, s{sT}")
    for w in range(4):
        for q in range(4):
            a.e(f"ds_read_b128 {vr(vO+16*w+4*q,4)}, v{vT0} offset:{w*4096 + q*1024}")
    a.e("s_waitcnt lgkmcnt(0)")
    for i in range(16):
        a.e(f"v_add_f32 v{vO+i}, v{vO+i}, v{vO+16+i}")
        a.e(f"v_add_f32 v{vO+32+i}, v{vO+32+i}, v{vO+48+i}")
    for i in range(16):
        a.e(f"v_add_f32 v{vO+i}, v{vO+i}, v{vO+32+i}")
    def get_l():
        a.e(f"v_mov_b32 v{vT0}, v{vO+12}")
        a.e(f"v_mov_b32 v{vT1}, v{vO+12}")
        a.e(f"v_permlane32_swap_b32 v{vT0}, v{vT1}")
    get_l()
    a.e(f"v_mov_b32 v{vT2}, {hx(f32(2.0**64))}")
    a.e(f"v_mov_b32 v{vT3}, {hx(f32(2.0**-64))}")
    a.e(f"v_cmp_lt_f32 vcc, v{vT1}, v{vT2}")
    a.e(f"v_cmp_gt_f32 s[40:41], v{vT1}, v{vT3}")
    a.e(f"s_and_b64 vcc, vcc, s[40:41]")
    a.e(f"s_cmp_eq_u64 vcc, -1")
    a.e(f"s_cbranch_scc0 L_{P}_slow")
    a.label(f"L_{P}_fin")
    a.e(f"v_rcp_f32 v{vT2}, v{vT1}")
    for i in range(16): a.e(f"v_mul_f32 v{vO+i}, v{vO+i}, v{vT2}")
    for i in range(8): a.e(f"v_cvt_pk_bf16_f32 v{vE+i}, v{vO+2*i}, v{vO+2*i+1}")
    a.e(f"v_mov_b32 v{vT3}, 0")
    a.e(f"v_cndmask_b32 v{vE+6}, v{vE+6}, v{vT3}, s[{sHi}:{sHi+1}]")
    a.e(f"v_cndmask_b32 v{vE+7}, v{vE+7}, v{vT3}, s[{sHi}:{sHi+1}]")
    a.e(f"s_lshl_b32 s{sT}, s{sQb}, 2")
    a.e(f"s_add_u32 s{sT}, s{sT}, s{sWv}")
    a.e(f"s_lshl_b32 s{sT}, s{sT}, 4")
    a.e(f"s_add_u32 s{sT}, s{sT}, s{sHead}")
    a.e(f"s_lshl_b32 s{sT}, s{sT}, 11")
    a.e(f"buffer_store_dwordx4 {vr(vE,4)}, v{vOff}, s[{sOo}:{sOo+3}], s{sT} offen")
    a.e(f"buffer_store_dwordx4 {vr(vE+4,4)}, v{vOff}, s[{sOo}:{sOo+3}], s{sT} offen offset:1024")
    a.label(f"L_{P}_end")
    a.e("s_endpgm")
    a.label(f"L_{P}_slow")
    q0 = vQ
    a.e(f"s_lshl_b32 s{sT}, s{sWv}, 11")
    a.e(f"s_add_u32 s{sT}, s{sT}, s{sQo}")
    a.e(f"buffer_load_dwordx4 {vr(q0,4)}, v{vOff}, s[{sQ}:{sQ+3}], s{sT} offen")
    a.e(f"buffer_load_dwordx4 {vr(q0+4,4)}, v{vOff}, s[{sQ}:{sQ+3}], s{sT} offen offset:1024")
    a.e(f"v_mov_b32 v{vT3}, 0")
    a.e("s_waitcnt vmcnt(0)")
    a.e(f"v_cndmask_b32 v{q0+6}, v{q0+6}, v{vT3}, s[{sHi}:{sHi+1}]")
    a.e(f"v_cndmask_b32 v{q0+7}, v{q0+7}, v{vT3}, s[{sHi}:{sHi+1}]")
    a.e(f"v_mov_b32 v{vT2}, 0xff800000")
    def kbase():
        a.e(f"s_lshl_b32 s{sKo}, s{sHead}, 17")
        a.e(f"s_add_u32 s{sKo}, s{sKo}, {OFF_K}")
        a.e(f"s_mov_b32 s{sIt}, 0")
    kbase()
    a.label(f"L_{P}_slowA")
    kvload(0, konly=True)
    a.e("s_waitcnt vmcnt(0)")
    for m in smf(0, 0, 0): a.e(m)
    for i in range(8): a.e(f"v_max3_f32 v{vT2}, v{vT2}, v{vS[0]+2*i}, v{vS[0]+2*i+1}")
    a.e(f"s_add_u32 s{sIt}, s{sIt}, 1")
    a.e(f"s_cmp_lt_u32 s{sIt}, 64")
    a.e(f"s_cbranch_scc1 L_{P}_slowA")
    a.e(f"v_mov_b32 v{vT0}, v{vT2}")
    a.e(f"v_permlane32_swap_b32 v{vT2}, v{vT0}")
    a.e(f"v_max_f32 v{vT2}, v{vT2}, v{vT0}")
    a.e(f"v_sub_f32 v{vT2}, 0, v{vT2}")
    a.e(f"v_cvt_pk_bf16_f32 v{vT0}, v{vT2}, v{vT2}")
    a.e(f"v_and_b32 v{vT0}, 0xffff0000, v{vT0}")
    a.e(f"v_sub_f32 v{vT1}, v{vT2}, v{vT0}")
    a.e(f"v_cvt_pk_bf16_f32 v{vE}, v{vT2}, v{vT1}")
    a.e(f"v_and_b32 v{vT0}, 0xffff0000, v{vE}")
    a.e(f"v_sub_f32 v{vT1}, v{vT1}, v{vT0}")
    a.e(f"v_cvt_pk_bf16_f32 v{vE+1}, v{vT1}, v{vT3}")
    a.e(f"v_cndmask_b32 v{q0+6}, v{q0+6}, v{vE}, s[{sHi}:{sHi+1}]")
    a.e(f"v_cndmask_b32 v{q0+7}, v{q0+7}, v{vE+1}, s[{sHi}:{sHi+1}]")
    for i in range(16): a.e(f"v_mov_b32 v{vO+i}, 0")
    kbase()
    a.label(f"L_{P}_slowB")
    kvload(0)
    a.e("s_waitcnt vmcnt(0)")
    for m in smf(0, 0, 0): a.e(m)
    for s_ in softmax_valu(vS[0], vP[0]): a.e(s_)
    for m in pvm(0, 0, 0): a.e(m)
    a.e(f"s_add_u32 s{sIt}, s{sIt}, 1")
    a.e(f"s_cmp_lt_u32 s{sIt}, 64")
    a.e(f"s_cbranch_scc1 L_{P}_slowB")
    get_l()
    a.e(f"s_branch L_{P}_fin")
    return nv, 48, lds

def build(extra=0):
    kernels = []
    text = ""
    bodies = {}
    for nm, fn in [("qkv", lambda a: t1_kernel(a, "qkv")), ("att", att_kernel), ("wo", lambda a: t2_kernel(a, "wo")),
                   ("ffn1", lambda a: t1_kernel(a, "ffn1")), ("ffn2", lambda a: t2_kernel(a, "ffn2"))]:
        a = Asm()
        a.label(f"B_{nm}")
        nv, ns, lds = fn(a)
        bodies[nm] = (a.text(), nv, ns, lds)
    grids = dict(qkv=256, att=256, wo=224, ffn1=224, ffn2=224)
    hdr = open("cdna_kernels/" + NAME + ".s.ref").read().split("\n")
    head = [l for l in hdr if l.startswith(";") and "@launch" not in l and "Override launch" not in l and "grid=ceil" not in l]
    head = [l for l in head if not l.startswith("; @")]
    out = "\n".join(head[:14]) + "\n"
    seq = []
    for L in range(2):
        for nm in ["qkv", "att", "wo", "ffn1", "ffn2"]:
            seq.append((nm, L))
    for nm, L in seq:
        out += f"; @launch kernel={nm}{L}_kernel grid=({grids[nm]},1,1) block=(256,1,1) lds={bodies[nm][3]}\n"
    for i in range(extra):
        out += f"; @launch kernel=nop_kernel grid=(256,1,1) block=(256,1,1) lds=0\n"
    out += '.amdgcn_target "amdgcn-amd-amdhsa--gfx950"\n.text\n'
    for nm in ["qkv", "att", "wo", "ffn1", "ffn2"]:
        for L in (1, 0):
            k = f"{nm}{L}_kernel"
            out += f".globl {k}\n.p2align 8\n.type {k},@function\n{k}:\n  s_mov_b32 s3, {L}\n"
            if L == 1: out += f"  s_branch B_{nm}\n"
        out += bodies[nm][0]
    if extra:
        out += ".globl nop_kernel\n.p2align 8\n.type nop_kernel,@function\nnop_kernel:\n  s_endpgm\n"
    out += '.section .rodata,"a"\n'
    for nm in ["qkv", "att", "wo", "ffn1", "ffn2"]:
        for L in (0, 1):
            k = f"{nm}{L}_kernel"
            nv = bodies[nm][1]
            nvv = (nv + 3) // 4 * 4
            out += f""".p2align 6
.amdhsa_kernel {k}
  .amdhsa_next_free_vgpr {nvv}
  .amdhsa_next_free_sgpr {max(bodies[nm][2], 56)}
  .amdhsa_accum_offset {nvv}
  .amdhsa_group_segment_fixed_size 0
  .amdhsa_kernarg_size 88
  .amdhsa_user_sgpr_count 2
  .amdhsa_user_sgpr_kernarg_segment_ptr 1
  .amdhsa_system_sgpr_workgroup_id_x 1
.end_amdhsa_kernel
"""
    if extra:
        out += """.p2align 6
.amdhsa_kernel nop_kernel
  .amdhsa_next_free_vgpr 8
  .amdhsa_next_free_sgpr 16
  .amdhsa_accum_offset 8
  .amdhsa_group_segment_fixed_size 0
  .amdhsa_kernarg_size 88
  .amdhsa_user_sgpr_count 2
  .amdhsa_user_sgpr_kernarg_segment_ptr 1
  .amdhsa_system_sgpr_workgroup_id_x 1
.end_amdhsa_kernel
"""
    return out

if __name__ == "__main__":
    path = sys.argv[1] if len(sys.argv) > 1 else "cdna_kernels/" + NAME + ".s"
    extra = int(sys.argv[2]) if len(sys.argv) > 2 else 0
    open(path, "w").write(build(extra))
    print("wrote", path)
```

```python
import sys
sys.path.insert(0, "dev")
import numpy as np
NPH = 30
def kern(name, spread, nkb, proto, allread):
    local = proto == 'L'
    if local: proto = 'A'
    cluster = 16
    per_wave = nkb // 4
    s = f""".globl {name}
.p2align 8
.type {name},@function
{name}:
  s_cmp_ge_u32 s2, 256
  s_cbranch_scc1 Lend_{name}
  s_load_dwordx2 s[4:5], s[0:1], 80
  s_load_dwordx2 s[6:7], s[0:1], 64
  v_lshrrev_b32 v1, 6, v0
  v_and_b32 v12, 63, v0
  v_lshlrev_b32 v2, 4, v12
  v_readfirstlane_b32 s20, v1
  s_waitcnt lgkmcnt(0)
  s_mov_b32 s8, s4
  s_mov_b32 s9, s5
  s_mov_b32 s10, 0x10000000
  s_mov_b32 s11, 0x20000
  s_mov_b32 s24, s6
  s_mov_b32 s25, s7
  s_mov_b32 s26, 0x100000
  s_mov_b32 s27, 0x20000
"""
    if spread:
        s += "  s_lshr_b32 s30, s2, 4\n  s_and_b32 s31, s2, 15\n"
    else:
        s += "  s_and_b32 s30, s2, 15\n  s_lshr_b32 s31, s2, 4\n"
    s += f"""  s_lshl_b32 s32, s30, 8
  s_add_u32 s32, s32, 0x8000000
  v_mov_b32 v3, s32
  v_lshl_add_u32 v13, v12, 2, s32
  s_lshl_b32 s41, s31, 2
  s_add_u32 s41, s41, s32
  v_mov_b32 v14, s41
  s_mov_b32 s33, 0
  s_mov_b32 s45, 0
Lwarm_{name}:
  buffer_load_dword v9, v3, s[8:11], s45 offen sc1
  s_add_u32 s45, s45, 8192
  s_cmp_lt_u32 s45, 245760
  s_cbranch_scc1 Lwarm_{name}
  s_waitcnt vmcnt(0)
  s_barrier
  s_memtime s[14:15]
Lp_{name}:
  s_lshl_b32 s34, s33, 22
  s_lshl_b32 s35, s30, 4
  s_add_u32 s35, s35, s31
  s_mul_i32 s35, s35, {nkb*1024}
  s_add_u32 s35, s35, s34
  s_mul_i32 s36, s20, {per_wave*1024}
  s_add_u32 s35, s35, s36
  v_mov_b32 v4, s33
  v_mov_b32 v5, s31
  v_mov_b32 v6, v0
  v_mov_b32 v7, s33
"""
    for i in range(per_wave):
        s += f"  buffer_store_dwordx4 v[4:7], v2, s[8:11], s35 offen{'' if local else ' sc1'}\n  s_add_u32 s35, s35, 1024\n"
    s += "  s_waitcnt vmcnt(0)\n  s_barrier\n"
    s += f"""  s_lshl_b32 s44, s33, 13
  s_cmp_eq_u32 s20, 0
  s_cbranch_scc0 Lw_{name}
  s_mov_b32 s38, 0
"""
    if proto in ("A", "B"):
        s += f"""  s_mov_b64 exec, 1
  v_mov_b32 v8, 1
  buffer_atomic_add v8, v3, s[8:11], s44 offen{'' if local else ' sc1'}
"""
    else:
        s += f"""  s_mov_b64 exec, 1
  v_mov_b32 v8, 1
  buffer_store_dword v8, v14, s[8:11], s44 offen sc1
  s_mov_b64 exec, 0xffff
"""
    addr = "v3" if proto in ("A", "B") else "v13"
    if proto in ("A", "C"):
        s += f"""Lspin_{name}:
  buffer_load_dword v9, {addr}, s[8:11], s44 offen sc1
  s_waitcnt vmcnt(0)
"""
        if proto == "A":
            s += f"  v_readfirstlane_b32 s39, v9\n  s_add_u32 s38, s38, 1\n  s_cmp_gt_u32 s38, 100000\n  s_cbranch_scc1 Lout_{name}\n  s_cmp_ge_u32 s39, 16\n  s_cbranch_scc0 Lspin_{name}\n"
        else:
            s += f"  v_cmp_eq_u32 vcc, 0, v9\n  s_add_u32 s38, s38, 1\n  s_cmp_gt_u32 s38, 100000\n  s_cbranch_scc1 Lout_{name}\n  s_nop 1\n  s_cbranch_vccnz Lspin_{name}\n"
    else:
        for i in range(3):
            s += f"  buffer_load_dword v{16+i}, {addr}, s[8:11], s44 offen sc1\n  s_sleep 1\n"
        s += f"Lspin_{name}:\n"
        for i in range(4):
            s += f"  buffer_load_dword v{16+(i+3)%4}, {addr}, s[8:11], s44 offen sc1\n  s_waitcnt vmcnt(3)\n"
            if proto == "B":
                s += f"  v_readfirstlane_b32 s39, v{16+i}\n  s_cmp_ge_u32 s39, 16\n  s_cbranch_scc1 Lout_{name}\n"
            else:
                s += f"  v_cmp_eq_u32 vcc, 0, v{16+i}\n  s_nop 3\n  s_cbranch_vccz Lout_{name}\n"
            s += "  s_sleep 1\n"
        s += f"  s_add_u32 s38, s38, 1\n  s_cmp_gt_u32 s38, 100000\n  s_cbranch_scc0 Lspin_{name}\n"
    s += f"""Lout_{name}:
  s_mov_b64 exec, -1
Lw_{name}:
  s_barrier
  s_add_u32 s40, s31, 1
  s_and_b32 s40, s40, 15
  s_lshl_b32 s35, s30, 4
  s_add_u32 s35, s35, s40
  s_mul_i32 s35, s35, {nkb*1024}
  s_add_u32 s35, s35, s34
  s_add_u32 s35, s35, s36
"""
    for i in range(per_wave):
        s += f"  buffer_load_dwordx4 v[{32+4*i}:{35+4*i}], v2, s[8:11], s35 offen sc1\n  s_add_u32 s35, s35, 1024\n"
    s += "  s_waitcnt vmcnt(0)\n"
    s += f"""  v_cmp_ne_u32 vcc, s33, v32
  v_cmp_ne_u32 s[42:43], s40, v{32+4*(per_wave-1)+1}
  s_or_b64 vcc, vcc, s[42:43]
  v_cmp_ne_u32 s[42:43], s33, v{32+4*(per_wave-1)+3}
  s_or_b64 vcc, vcc, s[42:43]
  s_cmp_eq_u64 vcc, 0
  s_cbranch_scc1 Lok_{name}
  v_mov_b32 v10, 0x7000
  v_mov_b32 v11, 1
  buffer_atomic_add v11, v10, s[24:27], 0 offen
Lok_{name}:
  s_add_u32 s33, s33, 1
  s_cmp_lt_u32 s33, {NPH}
  s_cbranch_scc1 Lp_{name}
  s_memtime s[16:17]
  s_waitcnt lgkmcnt(0)
  s_sub_u32 s16, s16, s14
  s_lshl_b32 s21, s2, 2
  s_add_u32 s21, s21, s20
  s_lshl_b32 s21, s21, 2
  v_mov_b32 v1, s21
  v_mov_b32 v3, s16
  s_mov_b64 exec, 1
  buffer_store_dword v3, v1, s[24:27], 0 offen
  s_waitcnt vmcnt(0)
Lend_{name}:
  s_endpgm
"""
    return s
def desc(name):
    return f""".amdhsa_kernel {name}
  .amdhsa_next_free_vgpr 256
  .amdhsa_next_free_sgpr 64
  .amdhsa_accum_offset 256
  .amdhsa_group_segment_fixed_size 0
  .amdhsa_kernarg_size 88
  .amdhsa_user_sgpr_count 2
  .amdhsa_user_sgpr_kernarg_segment_ptr 1
  .amdhsa_system_sgpr_workgroup_id_x 1
.end_amdhsa_kernel
"""
tests = {}
for spread in [0, 1]:
    for nkb in [4, 16]:
        for proto in ("AL" if spread == 0 else "A"):
            tests[f"s{spread}_k{nkb}_{proto}"] = (spread, nkb, proto, 0)
def gen(path):
    s = ""
    for n in tests: s += f"; @launch kernel=t_{n}_kernel grid=(256,1,1) block=(256,1,1) lds=0\n"
    s += '.amdgcn_target "amdgcn-amd-amdhsa--gfx950"\n.text\n'
    for n in tests: s += kern(f"t_{n}_kernel", *tests[n])
    s += '.section .rodata,"a"\n'
    for n in tests: s += ".p2align 6\n" + desc(f"t_{n}_kernel")
    open(path, "w").write(s)
if __name__ == "__main__":
    path = "mb_sync3.s"
    gen(path)
    if len(sys.argv) > 1: sys.exit(0)
    import hx
    from hx import cl
    asm, co, launches = hx.build(path)
    K = cl.AsmKernelList(co, launches, check=False)
    ws = cl.DeviceBuffer(1 << 28); out = cl.DeviceBuffer(1 << 20); dbg = cl.DeviceBuffer(1 << 16)
    ka = cl.pack_ptr_kernargs([ws.ptr]*8 + [out.ptr, dbg.ptr, ws.ptr])
    for n in tests:
        f = K._funcs[f"t_{n}_kernel"]
        for rep in range(2):
            hx.memset(ws, 0); hx.memset(out, 0); hx.sync()
            cl._launch_function(f, (256,1,1), (256,1,1), ka, 100*1024, None); hx.sync()
            o = out.to_numpy(np.uint32, (1 << 18,))
            t = o[:1024]
        print(f"{n:20s} cycles/phase median {np.median(t)/NPH:8.0f} max {t.max()/NPH:8.0f}  errors {o[0x7000//4]}")
```
